```python
import torch

def _softmax(x, axis=-1):
    return torch.softmax(x, dim=axis)
def _gelu(x):
    return torch.nn.functional.gelu(x, approximate="tanh")
def _silu(x):
    return torch.nn.functional.silu(x)
def _sigmoid(x):
    return torch.sigmoid(x)
def _layernorm(x, axis=-1, eps=1e-5):
    m = x.mean(dim=axis, keepdim=True)
    v = x.var(dim=axis, keepdim=True, unbiased=False)
    return (x - m) / torch.sqrt(v + eps)
def _scatter_add(tgt, idx, src, axis=0):
    return tgt.clone().index_add_(axis, idx, src)
def _segment_sum(src, seg, n):
    out = torch.zeros((n,) + src.shape[1:], dtype=src.dtype)
    return out.index_add_(0, seg, src)
def _pad(x, pw):
    flat = tuple(v for pair in reversed(pw) for v in pair)
    return torch.nn.functional.pad(x, flat)

kernel_name = 'parallel_sum__mha_block_cached__geglu_ffn__decode'

def setup_inputs():

    _w = (lambda a: (lambda t: t.to(torch.bfloat16) if t.is_floating_point() else t)(torch.as_tensor(a)))
    def _A_setup():
        B, Sq, D = 1, 1, 512
        H, Sk, Dh = 32, 32768, 128
        return {
            "x": _w((lambda *s: torch.randn(*s, dtype=torch.bfloat16) * 0.05)(B, Sq, D)),
            "k_cache": _w((lambda *s: torch.randn(*s, dtype=torch.bfloat16) * 3.2)(B, H, Sk, Dh)),
            "v_cache": _w((lambda *s: torch.randn(*s, dtype=torch.bfloat16) * 1.6)(B, H, Sk, Dh)),
            "wq": _w((lambda *s: torch.randn(*s, dtype=torch.bfloat16) * 3.2)(D, H * Dh) * (D ** -0.5)),
            "wo": _w((lambda *s: torch.randn(*s, dtype=torch.bfloat16) * 1.6)(H * Dh, D) * ((H * Dh) ** -0.5)),
        }
    _A_in = _A_setup()

    def _B_setup():
        B, S, D, F = 1, 1, 512, 1376
        return {
            "x": _w((lambda *s: torch.randn(*s, dtype=torch.bfloat16) * 0.05)(B, S, D)),
            "w_gate": _w((lambda *s: torch.randn(*s, dtype=torch.bfloat16) * 0.05)(D, F)),
            "w_up": _w((lambda *s: torch.randn(*s, dtype=torch.bfloat16) * 0.05)(D, F)),
            "w_down": _w((lambda *s: torch.randn(*s, dtype=torch.bfloat16) * 0.05)(F, D)),
        }
    _B_in = _B_setup()

    return {
        "A_x": _A_in["x"],
        "A_k_cache": _A_in["k_cache"],
        "A_v_cache": _A_in["v_cache"],
        "A_wq": _A_in["wq"],
        "A_wo": _A_in["wo"],
        "B_x": _B_in["x"],
        "B_w_gate": _B_in["w_gate"],
        "B_w_up": _B_in["w_up"],
        "B_w_down": _B_in["w_down"],
    }

def reference(A_x, A_k_cache, A_v_cache, A_wq, A_wo, B_x, B_w_gate, B_w_up, B_w_down):
    def _A_ref(x, k_cache, v_cache, wq, wo):
        B, Sq, D = x.shape
        H, Dh = 32, 128
        q = (lambda x, *d: x.permute(*d))((x @ wq).reshape(B, Sq, H, Dh), 0, 2, 1, 3)
        scores = torch.einsum("bhqd,bhkd->bhqk", q, k_cache) * (Dh ** -0.5)
        p = _softmax(scores, axis=-1)
        o = torch.einsum("bhqk,bhkd->bhqd", p, v_cache)
        return (lambda x, *d: x.permute(*d))(o, 0, 2, 1, 3).reshape(B, Sq, H * Dh) @ wo

    def _B_ref(x, w_gate, w_up, w_down):
        return (_gelu(x @ w_gate) * (x @ w_up)) @ w_down

    x = A_x
    xn = _layernorm(x, axis=-1)
    return x + _A_ref(xn, A_k_cache, A_v_cache, A_wq, A_wo) + _B_ref(xn, B_w_gate, B_w_up, B_w_down)
```

```python
import sys

KN = "parallel_sum__mha_block_cached__geglu_ffn__decode_kernel"
HEADER = """; Kernarg layout for this problem (96 bytes, ptrs only, base s[0:1]):
"""

class B:
    def __init__(self):
        self.L = []
    def __call__(self, s):
        self.L.append("  " + s)
    def label(self, s):
        self.L.append(s + ":")
    def c(self, s):
        self.L.append("  ; " + s)
    def nop(self, n):
        while n > 0:
            k = min(n, 16)
            self.L.append(f"  s_nop {k-1}")
            n -= k

DPP_ALL = "row_mask:0xf bank_mask:0xf"

def gen(fname, kvflags="nt", wflags="", NB=4, P1_AT=4, P2_AT=2, use_pk=False):
    a = B()
    TAG = 0x5EED
    OSLOT = 0
    YSLOT = 0x80000
    HBUF = 0xC0000
    L_XN = 0
    L_QP = 2048
    L_QB = 6144
    L_FP = 6400
    L_OW = 8192
    L_OWML = 12288
    L_O2 = 12544
    L_O2 = 12800
    L_O2ML = 16896
    L_YP = 17152
    L_BP = 19200
    LDS_BYTES = 21504
    sX, sK, sV, sWQ, sWO, sWG, sWU = 16, 18, 20, 22, 24, 28, 30
    sWD, sOUT, sDBG, sWS = 32, 34, 36, 38
    SRDK, SRDV, SRDQ = 40, 44, 48
    sH, sS, sWAVE, sCHUNK, sCVALID = 52, 53, 54, 55, 56
    sOFF, sCNT, sMASK, sSCALE, sLOG2E = 57, 58, 59, 60, 61
    sT0, sT1, sT2, sT3, sT4, sT5 = 62, 63, 64, 65, 66, 67
    sXRES = 68
    sOS, sYS, sHB = 70, 72, 74
    sSPIN = 76
    sEX = 78
    sTAGS = 80
    vTID, vL16 = 0, 1
    vLANE, vTA, vTB = 2, 3, 11
    vQ = 4
    vM, vL, vMN = 8, 9, 10
    vO = 12
    vS = 20
    vT = 24
    vWO = 40
    vWD = 48
    vP = 52
    vGU = 56
    vKV = 64
    vWQ = 192
    assert NB * 32 <= 128

    def kreg(b, i): return vKV + b * 32 + i * 4
    def vreg(b, i): return vKV + b * 32 + 16 + i * 4

    def row_allreduce(ops, regs, tmp=None):
        pad = max(0, 3 - len(regs))
        for pat in ("quad_perm:[1,0,3,2]", "quad_perm:[2,3,0,1]", "row_half_mirror", "row_mirror"):
            for r in regs:
                a(f"{ops}_dpp v{r}, v{r}, v{r} {pat} {DPP_ALL}")
            if pad: a.nop(pad)

    def wave_sum_uniform(r, op="v_add_f32"):
        a.nop(2)
        row_allreduce(op, [r])
        a.nop(1)
        for k, ln in enumerate((0, 16, 32, 48)):
            a(f"v_readlane_b32 s{sT0+k}, v{r}, {ln}")
        a.nop(2)
        a(f"v_mov_b32 v{r}, s{sT0}")
        a(f"{op} v{r}, s{sT0+1}, v{r}")
        a(f"{op} v{r}, s{sT0+2}, v{r}")
        a(f"{op} v{r}, s{sT0+3}, v{r}")

    def bf16r1(r, t):
        a(f"v_cvt_pk_bf16_f32 v{t}, v{r}, v{r}")
        a(f"v_lshlrev_b32 v{r}, 16, v{t}")
    def bf16r2(r0, r1, t):
        a(f"v_cvt_pk_bf16_f32 v{t}, v{r0}, v{r1}")
        a(f"v_lshlrev_b32 v{r0}, 16, v{t}")
        a(f"v_and_b32 v{r1}, s{sMASK}, v{t}")

    def swap_reduce8(r):
        a.nop(2)
        for j in range(4):
            a(f"v_permlane32_swap_b32 v{r+j}, v{r+j+4}")
        a.nop(1)
        for j in range(4):
            a(f"v_add_f32 v{r+j}, v{r+j}, v{r+j+4}")
        a.nop(2)
        for j in range(2):
            a(f"v_permlane16_swap_b32 v{r+j}, v{r+j+2}")
        a.nop(1)
        for j in range(2):
            a(f"v_add_f32 v{r+j}, v{r+j}, v{r+j+2}")

    a.L.append(HEADER + f"; @launch grid=(256,1,1) block=(512,1,1) lds={LDS_BYTES}")
    a.L.append('.amdgcn_target "amdgcn-amd-amdhsa--gfx950"')
    a.L.append(".text")
    a.L.append(f".globl {KN}")
    a.L.append(".p2align 8")
    a.L.append(f".type {KN},@function")
    a.label(KN)
    a("s_cmp_ge_u32 s2, 256")
    a("s_cbranch_scc1 L_end")
    a("s_load_dwordx16 s[16:31], s[0:1], 0")
    a("s_load_dwordx8 s[32:39], s[0:1], 64")
    a(f"v_lshrrev_b32 v{vTA}, 6, v{vTID}")
    a(f"v_and_b32 v{vLANE}, 63, v{vTID}")
    a(f"v_readfirstlane_b32 s{sWAVE}, v{vTA}")
    a(f"v_lshlrev_b32 v{vL16}, 4, v{vLANE}")
    a(f"s_and_b32 s{sH}, s2, 31")
    a(f"s_lshr_b32 s{sS}, s2, 5")
    a(f"s_mov_b32 s{sMASK}, 0xffff0000")
    a(f"s_mov_b32 s{sSCALE}, 0x3db504f3")
    a(f"s_mov_b32 s{sLOG2E}, 0x3fb8aa3b")
    a(f"s_and_b32 s{sT0}, s2, 7")
    a(f"s_lshr_b32 s{sT1}, s2, 3")
    a(f"s_mul_i32 s{sCHUNK}, s{sT0}, 22")
    a(f"s_add_u32 s{sCHUNK}, s{sCHUNK}, s{sT1}")
    a(f"s_cmp_lt_u32 s{sT1}, 22")
    a(f"s_cselect_b32 s{sCVALID}, 1, 0")
    a(f"s_cmp_lt_u32 s{sCHUNK}, 172")
    a(f"s_cselect_b32 s{sCVALID}, s{sCVALID}, 0")
    a(f"s_cmp_eq_u32 s{sCVALID}, 1")
    a(f"s_cselect_b32 s{sCHUNK}, s{sCHUNK}, 0")
    vWQO, vGUO, vWOO, vWDO = vT, vT+1, vT+2, vT+3
    a(f"v_lshrrev_b32 v{vTA}, 4, v{vTID}")
    a(f"v_lshlrev_b32 v{vTA}, 17, v{vTA}")
    a(f"v_and_b32 v{vTB}, 15, v{vTID}")
    a(f"v_lshl_add_u32 v{vWQO}, v{vTB}, 4, v{vTA}")
    a(f"s_movk_i32 s{sT2}, 2752")
    a(f"s_lshl_b32 s{sT3}, s{sCHUNK}, 4")
    a(f"v_mul_u32_u24 v{vGUO}, s{sT2}, v{vTID}")
    a(f"v_add_u32 v{vGUO}, s{sT3}, v{vGUO}")
    a(f"v_lshrrev_b32 v{vTA}, 3, v{vTID}")
    a(f"v_and_b32 v{vTB}, 7, v{vTID}")
    a(f"v_lshlrev_b32 v{vTB}, 4, v{vTB}")
    a(f"v_lshl_add_u32 v{vWOO}, v{vTA}, 10, v{vTB}")
    a(f"s_lshl_b32 s{sT2}, s{sH}, 17")
    a(f"s_lshl_b32 s{sT3}, s{sS}, 7")
    a(f"s_add_u32 s{sT2}, s{sT2}, s{sT3}")
    a(f"v_add_u32 v{vWOO}, s{sT2}, v{vWOO}")
    a(f"v_min_u32 v{vTA}, 42, v{vTA}")
    a(f"v_lshl_add_u32 v{vWDO}, v{vTA}, 10, v{vTB}")
    a(f"s_mul_i32 s{sT2}, s{sH}, {43*1024}")
    a(f"s_add_u32 s{sT2}, s{sT2}, s{sT3}")
    a(f"v_add_u32 v{vWDO}, s{sT2}, v{vWDO}")
    a(f"s_lshl_b32 s{sOFF}, s{sS}, 20")
    a(f"s_lshl_b32 s{sT2}, s{sWAVE}, 12")
    a(f"s_add_u32 s{sOFF}, s{sOFF}, s{sT2}")
    a("s_waitcnt lgkmcnt(0)")
    a(f"s_lshl_b32 s{sT2}, s{sH}, 23")
    a(f"s_add_u32 s{SRDK}, s{sK}, s{sT2}"); a(f"s_addc_u32 s{SRDK+1}, s{sK+1}, 0")
    a(f"s_mov_b32 s{SRDK+2}, 0x800000"); a(f"s_mov_b32 s{SRDK+3}, 0x20000")
    a(f"s_add_u32 s{SRDV}, s{sV}, s{sT2}"); a(f"s_addc_u32 s{SRDV+1}, s{sV+1}, 0")
    a(f"s_mov_b32 s{SRDV+2}, 0x800000"); a(f"s_mov_b32 s{SRDV+3}, 0x20000")
    a(f"s_mov_b32 s{SRDQ}, s{sWQ}"); a(f"s_mov_b32 s{SRDQ+1}, s{sWQ+1}")
    a(f"s_mov_b32 s{SRDQ+2}, 0x400000"); a(f"s_mov_b32 s{SRDQ+3}, 0x20000")
    a(f"s_lshl_b32 s{sT2}, s{sH}, 3"); a(f"s_add_u32 s{sT2}, s{sT2}, s{sS}"); a(f"s_lshl_b32 s{sT2}, s{sT2}, 11")
    a(f"s_add_u32 s{sOS}, s{sWS}, s{sT2}"); a(f"s_addc_u32 s{sOS+1}, s{sWS+1}, 0")
    a(f"s_lshl_b32 s{sT2}, s{sS}, 5"); a(f"s_add_u32 s{sT2}, s{sT2}, s{sH}"); a(f"s_lshl_b32 s{sT2}, s{sT2}, 10")
    a(f"s_add_u32 s{sT2}, s{sT2}, {YSLOT}")
    a(f"s_add_u32 s{sYS}, s{sWS}, s{sT2}"); a(f"s_addc_u32 s{sYS+1}, s{sWS+1}, 0")
    a(f"s_add_u32 s{sHB}, s{sWS}, {HBUF}"); a(f"s_addc_u32 s{sHB+1}, s{sWS+1}, 0")
    a(f"s_cmp_lg_u32 s{sWAVE}, 0")
    a("s_cbranch_scc1 L_noclear")
    for k in range(4):
        a(f"v_mov_b32 v{vT+4+k}, 0")
    a(f"global_store_dwordx4 v{vL16}, v[{vT+4}:{vT+7}], s[{sOS}:{sOS+1}] sc0 sc1")
    a(f"global_store_dwordx4 v{vL16}, v[{vT+4}:{vT+7}], s[{sOS}:{sOS+1}] offset:1024 sc0 sc1")
    a(f"global_store_dwordx4 v{vL16}, v[{vT+4}:{vT+7}], s[{sYS}:{sYS+1}] sc0 sc1")
    a(f"s_cmp_eq_u32 s{sCVALID}, 0")
    a("s_cbranch_scc1 L_noclear")
    a(f"s_lshl_b32 s{sT2}, s{sCHUNK}, 6")
    a(f"v_lshl_add_u32 v{vTA}, v{vLANE}, 3, s{sT2}")
    a(f"v_cmp_gt_u32 vcc, 8, v{vLANE}")
    a(f"s_and_saveexec_b64 s[{sEX}:{sEX+1}], vcc")
    a(f"global_store_dwordx2 v{vTA}, v[{vT+4}:{vT+5}], s[{sHB}:{sHB+1}] sc0 sc1")
    a(f"s_mov_b64 exec, s[{sEX}:{sEX+1}]")
    a.label("L_noclear")
    vXR = vT + 8
    a(f"global_load_dwordx4 v[{vXR}:{vXR+3}], v{vL16}, s[{sX}:{sX+1}]")
    a(f"s_lshl_b32 s{sT2}, s{sH}, 8")
    for i in range(16):
        a(f"buffer_load_dwordx4 v[{vWQ+4*i}:{vWQ+4*i+3}], v{vWQO}, s[{SRDQ}:{SRDQ+3}], s{sT2} offen {wflags}")
        if i < 15: a(f"s_add_u32 s{sT2}, s{sT2}, 8192")
    a(f"global_load_dwordx4 v[{vGU}:{vGU+3}], v{vGUO}, s[{sWG}:{sWG+1}] {wflags}")
    a(f"global_load_dwordx4 v[{vGU+4}:{vGU+7}], v{vGUO}, s[{sWU}:{sWU+1}] {wflags}")
    a(f"global_load_dwordx4 v[{vWO}:{vWO+3}], v{vWOO}, s[{sWO}:{sWO+1}] {wflags}")
    a(f"v_add_u32 v{vWOO}, 0x10000, v{vWOO}")
    a(f"global_load_dwordx4 v[{vWO+4}:{vWO+7}], v{vWOO}, s[{sWO}:{sWO+1}] {wflags}")
    a(f"global_load_dwordx4 v[{vWD}:{vWD+3}], v{vWDO}, s[{sWD}:{sWD+1}] {wflags}")
    def issue_k(b):
        for i in range(4):
            a(f"buffer_load_dwordx4 v[{kreg(b,i)}:{kreg(b,i)+3}], v{vL16}, s[{SRDK}:{SRDK+3}], s{sOFF} offen offset:{i*1024} {kvflags}")
    def issue_v(b):
        for i in range(4):
            a(f"buffer_load_dwordx4 v[{vreg(b,i)}:{vreg(b,i)+3}], v{vL16}, s[{SRDV}:{SRDV+3}], s{sOFF} offen offset:{i*1024} {kvflags}")
        a(f"s_add_u32 s{sOFF}, s{sOFF}, 32768")
    for b in range(NB):
        issue_k(b); issue_v(b)
    NKV = NB * 8
    a(f"s_lshl_b32 s{sT2}, s{sS}, 7"); a(f"s_lshl_b32 s{sT3}, s{sH}, 2"); a(f"s_add_u32 s{sT2}, s{sT2}, s{sT3}")
    a(f"s_load_dword s{sXRES}, s[{sX}:{sX+1}], s{sT2}")
    a(f"s_waitcnt vmcnt({16+2+3+NKV})")
    a(f"s_cmp_lg_u32 s{sWAVE}, 0")
    a("s_cbranch_scc1 L_nosig")
    a(f"v_mov_b32 v{vTA}, 0"); a(f"v_mov_b32 v{vTB}, 1")
    a(f"v_cmp_eq_u32 vcc, 0, v{vLANE}")
    a(f"s_and_saveexec_b64 s[{sEX}:{sEX+1}], vcc")
    a(f"global_atomic_add v{vTA}, v{vTB}, s[{sDBG}:{sDBG+1}] sc1")
    a(f"s_mov_b64 exec, s[{sEX}:{sEX+1}]")
    a.label("L_nosig")
    vF = vO
    for j in range(4):
        a(f"v_lshlrev_b32 v{vF+2*j}, 16, v{vXR+j}")
        a(f"v_and_b32 v{vF+2*j+1}, s{sMASK}, v{vXR+j}")
    vSUM, vMEAN, vVAR, vR, vTT = vS, vS+1, vS+2, vS+3, vTA
    a(f"v_add_f32 v{vSUM}, v{vF}, v{vF+1}")
    for j in range(2, 8):
        a(f"v_add_f32 v{vSUM}, v{vSUM}, v{vF+j}")
    wave_sum_uniform(vSUM)
    a(f"v_mul_f32 v{vMEAN}, 0x3b000000, v{vSUM}")
    a(f"v_sub_f32 v{vTT}, v{vF}, v{vMEAN}")
    a(f"v_mul_f32 v{vVAR}, v{vTT}, v{vTT}")
    for j in range(1, 8):
        a(f"v_sub_f32 v{vTT}, v{vF+j}, v{vMEAN}")
        a(f"v_fmac_f32 v{vVAR}, v{vTT}, v{vTT}")
    wave_sum_uniform(vVAR)
    a(f"v_mul_f32 v{vVAR}, 0x3b000000, v{vVAR}")
    bf16r2(vMEAN, vVAR, vTT)
    a(f"v_add_f32 v{vVAR}, 0x3727c5ac, v{vVAR}")
    bf16r1(vVAR, vTT)
    a(f"v_sqrt_f32 v{vVAR}, v{vVAR}")
    a.nop(1)
    bf16r1(vVAR, vTT)
    a(f"v_rcp_f32 v{vR}, v{vVAR}")
    for j in range(8):
        a(f"v_sub_f32 v{vF+j}, v{vF+j}, v{vMEAN}")
    for j in range(4):
        bf16r2(vF+2*j, vF+2*j+1, vTT)
    for j in range(8):
        a(f"v_mul_f32 v{vTT}, v{vF+j}, v{vR}")
        a(f"v_fma_f32 v{vTB}, -v{vTT}, v{vVAR}, v{vF+j}")
        a(f"v_fma_f32 v{vF+j}, v{vTB}, v{vR}, v{vTT}")
    for j in range(4):
        bf16r2(vF+2*j, vF+2*j+1, vTT)
    a(f"v_lshlrev_b32 v{vTA}, 5, v{vLANE}")
    a(f"ds_write_b128 v{vTA}, v[{vF}:{vF+3}] offset:{L_XN}")
    a(f"ds_write_b128 v{vTA}, v[{vF+4}:{vF+7}] offset:{L_XN+16}")
    a(f"v_lshrrev_b32 v{vTA}, 4, v{vTID}")
    a(f"v_lshlrev_b32 v{vTA}, 6, v{vTA}")
    a(f"v_lshlrev_b32 v{vTB}, 2, v{vTID}")
    a("s_waitcnt lgkmcnt(0)")
    vXN = vT
    for k in range(4):
        a(f"ds_read_b128 v[{vXN+4*k}:{vXN+4*k+3}], v{vTA} offset:{L_XN+16*k}")
    vXT = vQ
    a(f"ds_read_b32 v{vXT}, v{vTB} offset:{L_XN}")
    a("s_waitcnt lgkmcnt(0)")
    vA = vO
    for j in range(8):
        a(f"v_mov_b32 v{vA+j}, 0")
    for i in range(16):
        a(f"s_waitcnt vmcnt({15-i+2+3+NKV})")
        for j in range(4):
            w = vWQ + 4*i + j
            a(f"v_lshlrev_b32 v{vS}, 16, v{w}")
            a(f"v_and_b32 v{vS+1}, s{sMASK}, v{w}")
            a(f"v_fmac_f32 v{vA+2*j}, v{vXN+i}, v{vS}")
            a(f"v_fmac_f32 v{vA+2*j+1}, v{vXN+i}, v{vS+1}")
    swap_reduce8(vA)
    a(f"v_and_b32 v{vTA}, 15, v{vLANE}")
    a(f"v_lshlrev_b32 v{vTA}, 5, v{vTA}")
    a(f"v_lshrrev_b32 v{vTB}, 4, v{vLANE}")
    a(f"v_lshl_add_u32 v{vTA}, v{vTB}, 3, v{vTA}")
    vDIMOFF = vQ + 1
    a(f"v_mov_b32 v{vDIMOFF}, v{vTA}")
    a(f"s_lshl_b32 s{sT2}, s{sWAVE}, 9")
    a(f"v_add_u32 v{vTA}, s{sT2}, v{vTA}")
    a(f"ds_write_b64 v{vTA}, v[{vA}:{vA+1}] offset:{L_QP}")
    a(f"s_waitcnt vmcnt({3+NKV})")
    vG = vWQ
    for j in range(8):
        w = vGU + j
        a(f"v_lshlrev_b32 v{vG+2*j}, 16, v{w}")
        a(f"v_and_b32 v{vG+2*j+1}, s{sMASK}, v{w}")
    for j in range(16):
        a(f"v_mul_f32 v{vG+j}, v{vXT}, v{vG+j}")
    a.nop(2)
    for j in range(8):
        a(f"v_permlane32_swap_b32 v{vG+j}, v{vG+j+8}")
    a.nop(1)
    for j in range(8):
        a(f"v_add_f32 v{vG+j}, v{vG+j}, v{vG+j+8}")
    a.nop(2)
    for j in range(4):
        a(f"v_permlane16_swap_b32 v{vG+j}, v{vG+j+4}")
    a.nop(1)
    for j in range(4):
        a(f"v_add_f32 v{vG+j}, v{vG+j}, v{vG+j+4}")
    a.nop(2)
    row_allreduce("v_add_f32", [vG, vG+1, vG+2, vG+3])
    a(f"v_lshrrev_b32 v{vTB}, 4, v{vLANE}")
    a(f"v_lshlrev_b32 v{vTB}, 4, v{vTB}")
    a(f"s_lshl_b32 s{sT2}, s{sWAVE}, 6")
    a(f"v_add_u32 v{vTB}, s{sT2}, v{vTB}")
    a(f"ds_write_b128 v{vTB}, v[{vG}:{vG+3}] offset:{L_FP}")
    a("s_waitcnt lgkmcnt(0)")
    a("s_barrier")
    for w in range(8):
        a(f"ds_read_b64 v[{vT+2*w}:{vT+2*w+1}], v{vDIMOFF} offset:{L_QP+512*w}")
    a(f"s_cmp_lg_u32 s{sWAVE}, 1")
    a("s_cbranch_scc1 L_noffn")
    a(f"v_and_b32 v{vTA}, 7, v{vLANE}")
    a(f"v_lshlrev_b32 v{vTA}, 2, v{vTA}")
    for w in range(8):
        a(f"ds_read_b32 v{vG+w}, v{vTA} offset:{L_FP+64*w}")
        a(f"ds_read_b32 v{vG+8+w}, v{vTA} offset:{L_FP+64*w+32}")
    a("s_waitcnt lgkmcnt(0)")
    for w in range(1, 8):
        a(f"v_add_f32 v{vG}, v{vG}, v{vG+w}")
        a(f"v_add_f32 v{vG+8}, v{vG+8}, v{vG+8+w}")
    g, u = vG, vG+8
    bf16r2(g, u, vG+1)
    t1, t2 = vG+1, vG+2
    a(f"v_mul_f32 v{t1}, v{g}, v{g}")
    a(f"v_mov_b32 v{t2}, 0x3d372713")
    a(f"v_mul_f32 v{t1}, v{t1}, v{g}")
    a(f"v_fma_f32 v{t1}, v{t1}, v{t2}, v{g}")
    a(f"v_mul_f32 v{t1}, 0x3f4c422a, v{t1}")
    a(f"v_mul_f32 v{t1}, 0x4038aa3b, v{t1}")
    a(f"v_exp_f32 v{t1}, v{t1}")
    a.nop(1)
    a(f"v_add_f32 v{t1}, 1.0, v{t1}")
    a(f"v_rcp_f32 v{t1}, v{t1}")
    a.nop(1)
    a(f"v_fma_f32 v{t1}, v{t1}, -2.0, 1.0")
    a(f"v_add_f32 v{t1}, 1.0, v{t1}")
    a(f"v_mul_f32 v{t2}, 0.5, v{g}")
    a(f"v_mul_f32 v{t1}, v{t2}, v{t1}")
    bf16r1(t1, t2)
    a(f"v_mul_f32 v{t1}, v{t1}, v{u}")
    bf16r1(t1, t2)
    a(f"v_mov_b32 v{vG+4}, v{t1}")
    a(f"v_mov_b32 v{vG+5}, {TAG}")
    a(f"s_cmp_eq_u32 s{sCVALID}, 0")
    a("s_cbranch_scc1 L_noffn")
    a(f"s_lshl_b32 s{sT2}, s{sCHUNK}, 6")
    a(f"v_lshl_add_u32 v{vTA}, v{vLANE}, 3, s{sT2}")
    a(f"v_cmp_gt_u32 vcc, 8, v{vLANE}")
    a(f"s_and_saveexec_b64 s[{sEX}:{sEX+1}], vcc")
    a(f"global_store_dwordx2 v{vTA}, v[{vG+4}:{vG+5}], s[{sHB}:{sHB+1}] sc0 sc1")
    a(f"s_mov_b64 exec, s[{sEX}:{sEX+1}]")
    a.label("L_noffn")
    a("s_waitcnt lgkmcnt(0)")
    for w in range(1, 8):
        a(f"v_add_f32 v{vT}, v{vT}, v{vT+2*w}")
        a(f"v_add_f32 v{vT+1}, v{vT+1}, v{vT+2*w+1}")
    a(f"v_cvt_pk_bf16_f32 v{vT}, v{vT}, v{vT+1}")
    a(f"v_lshrrev_b32 v{vTA}, 1, v{vDIMOFF}")
    a(f"ds_write_b32 v{vTA}, v{vT} offset:{L_QB}")
    a(f"v_and_b32 v{vTB}, 15, v{vLANE}")
    a(f"v_lshlrev_b32 v{vTB}, 4, v{vTB}")
    a("s_waitcnt lgkmcnt(0)")
    a(f"ds_read_b128 v[{vQ}:{vQ+3}], v{vTB} offset:{L_QB}")
    a(f"v_mov_b32 v{vM}, 0xff800000")
    a(f"v_mov_b32 v{vL}, 0")
    a(f"v_mov_b32 v{vMN}, 0")
    for j in range(8):
        a(f"v_mov_b32 v{vO+j}, 0")
    a("s_waitcnt lgkmcnt(0)")

    uid = [0]
    def tile(b, reissue, wk, wv):
        u = uid[0]; uid[0] += 1
        a(f"s_waitcnt vmcnt({wk})")
        for j in range(4):
            for i in range(4):
                src2 = "0" if j == 0 else f"v{vS+i}"
                a(f"v_dot2_f32_bf16 v{vS+i}, v{kreg(b,i)+j}, v{vQ+j}, {src2}")
        if reissue:
            issue_k(b)
        else:
            a.nop(3)
        row_allreduce("v_add_f32", [vS, vS+1, vS+2, vS+3])
        a(f"v_cvt_pk_bf16_f32 v{vT}, v{vS}, v{vS+1}")
        a(f"v_cvt_pk_bf16_f32 v{vT+1}, v{vS+2}, v{vS+3}")
        a(f"v_lshlrev_b32 v{vS}, 16, v{vT}")
        a(f"v_and_b32 v{vS+1}, s{sMASK}, v{vT}")
        a(f"v_lshlrev_b32 v{vS+2}, 16, v{vT+1}")
        a(f"v_and_b32 v{vS+3}, s{sMASK}, v{vT+1}")
        for i in range(4):
            a(f"v_mul_f32 v{vS+i}, s{sSCALE}, v{vS+i}")
        a(f"v_cvt_pk_bf16_f32 v{vT}, v{vS}, v{vS+1}")
        a(f"v_cvt_pk_bf16_f32 v{vT+1}, v{vS+2}, v{vS+3}")
        a(f"v_lshlrev_b32 v{vS}, 16, v{vT}")
        a(f"v_and_b32 v{vS+1}, s{sMASK}, v{vT}")
        a(f"v_lshlrev_b32 v{vS+2}, 16, v{vT+1}")
        a(f"v_and_b32 v{vS+3}, s{sMASK}, v{vT+1}")
        a(f"v_max3_f32 v{vT}, v{vS}, v{vS+1}, v{vS+2}")
        a(f"v_max3_f32 v{vT}, v{vT}, v{vS+3}, v{vM}")
        a(f"v_cmp_gt_f32 vcc, v{vT}, v{vM}")
        a(f"s_cbranch_vccz L_nors{u}")
        a(f"v_sub_f32 v{vT+1}, v{vM}, v{vT}")
        a(f"v_mul_f32 v{vT+1}, s{sLOG2E}, v{vT+1}")
        a(f"v_exp_f32 v{vT+1}, v{vT+1}")
        a(f"v_mov_b32 v{vM}, v{vT}")
        a(f"v_mul_f32 v{vMN}, s{sLOG2E}, v{vT}")
        a(f"v_sub_f32 v{vMN}, 0, v{vMN}")
        a(f"v_mul_f32 v{vL}, v{vL}, v{vT+1}")
        for j in range(8):
            a(f"v_mul_f32 v{vO+j}, v{vO+j}, v{vT+1}")
        a.label(f"L_nors{u}")
        for i in range(4):
            a(f"v_fma_f32 v{vS+i}, v{vS+i}, s{sLOG2E}, v{vMN}")
        for i in range(4):
            a(f"v_exp_f32 v{vS+i}, v{vS+i}")
        a(f"s_waitcnt vmcnt({wv})")
        for i in range(4):
            a(f"v_add_f32 v{vL}, v{vL}, v{vS+i}")
            for j in range(4):
                w = vreg(b, i) + j
                t = vT + 2*j
                a(f"v_lshlrev_b32 v{t}, 16, v{w}")
                a(f"v_and_b32 v{t+1}, s{sMASK}, v{w}")
            for j in range(8):
                a(f"v_fmac_f32 v{vO+j}, v{vS+i}, v{vT+j}")
        if reissue:
            issue_v(b)

    NROUND = 32 // NB
    a(f"s_mov_b32 s{sCNT}, {NROUND-1}")
    a.label("L_loop")
    a(f"s_cmp_eq_u32 s{sCNT}, {P1_AT}")
    a("s_cbranch_scc1 L_p1")
    a.label("L_p1_ret")
    a(f"s_cmp_eq_u32 s{sCNT}, {P2_AT}")
    a("s_cbranch_scc1 L_p2")
    a.label("L_p2_ret")
    for b in range(NB):
        tile(b, True, NKV-4, NKV-4)
    a(f"s_sub_u32 s{sCNT}, s{sCNT}, 1")
    a(f"s_cmp_lg_u32 s{sCNT}, 0")
    a("s_cbranch_scc1 L_loop")
    for b in range(NB):
        rem = NKV - b*8
        tile(b, False, rem-4, rem-8)

    for k, ln in enumerate((0, 16, 32, 48)):
        a(f"v_readlane_b32 s{sT0+k}, v{vM}, {ln}")
    a.nop(2)
    a(f"v_mov_b32 v{vT}, s{sT0}")
    for k in range(1, 4):
        a(f"v_max_f32 v{vT}, s{sT0+k}, v{vT}")
    a(f"v_sub_f32 v{vT+1}, v{vM}, v{vT}")
    a(f"v_mul_f32 v{vT+1}, s{sLOG2E}, v{vT+1}")
    a(f"v_exp_f32 v{vT+1}, v{vT+1}")
    a.nop(1)
    a(f"v_mul_f32 v{vL}, v{vL}, v{vT+1}")
    for j in range(8):
        a(f"v_mul_f32 v{vO+j}, v{vO+j}, v{vT+1}")
    for k, ln in enumerate((0, 16, 32, 48)):
        a(f"v_readlane_b32 s{sT0+k}, v{vL}, {ln}")
    swap_reduce8(vO)
    a(f"v_mov_b32 v{vT+1}, s{sT0}")
    for k in range(1, 4):
        a(f"v_add_f32 v{vT+1}, s{sT0+k}, v{vT+1}")
    a(f"v_and_b32 v{vTA}, 15, v{vLANE}")
    a(f"v_lshlrev_b32 v{vTA}, 5, v{vTA}")
    a(f"v_lshrrev_b32 v{vTB}, 4, v{vLANE}")
    a(f"v_lshl_add_u32 v{vTA}, v{vTB}, 3, v{vTA}")
    a(f"s_lshl_b32 s{sT2}, s{sWAVE}, 9")
    a(f"v_add_u32 v{vTA}, s{sT2}, v{vTA}")
    a(f"ds_write_b64 v{vTA}, v[{vO}:{vO+1}] offset:{L_OW}")
    a(f"s_lshl_b32 s{sT2}, s{sWAVE}, 3")
    a(f"v_mov_b32 v{vTB}, s{sT2}")
    a(f"ds_write_b64 v{vTB}, v[{vT}:{vT+1}] offset:{L_OWML}")
    a("s_waitcnt lgkmcnt(0)")
    a("s_barrier")
    a(f"s_cmp_lg_u32 s{sWAVE}, 0")
    a("s_cbranch_scc1 L_nopub")
    a(f"v_lshlrev_b32 v{vTA}, 3, v{vLANE}")
    a(f"v_mov_b32 v{vTB}, 0")
    vOw, vML = vKV, vKV + 16
    for w in range(8):
        a(f"ds_read_b64 v[{vML+2*w}:{vML+2*w+1}], v{vTB} offset:{L_OWML+8*w}")
    for w in range(8):
        a(f"ds_read_b64 v[{vOw+2*w}:{vOw+2*w+1}], v{vTA} offset:{L_OW+512*w}")
    a("s_waitcnt lgkmcnt(8)")
    def combine8(vml, vo_list, nvals, vMx, vLs, vE, dst):
        a(f"v_max3_f32 v{vMx}, v{vml}, v{vml+2}, v{vml+4}")
        a(f"v_max3_f32 v{vMx}, v{vMx}, v{vml+6}, v{vml+8}")
        a(f"v_max3_f32 v{vMx}, v{vMx}, v{vml+10}, v{vml+12}")
        a(f"v_max_f32 v{vMx}, v{vMx}, v{vml+14}")
        for w in range(8):
            a(f"v_sub_f32 v{vml+2*w}, v{vml+2*w}, v{vMx}")
        for w in range(8):
            a(f"v_mul_f32 v{vml+2*w}, s{sLOG2E}, v{vml+2*w}")
        for w in range(8):
            a(f"v_exp_f32 v{vml+2*w}, v{vml+2*w}")
        a.nop(1)
        a(f"v_mul_f32 v{vLs}, v{vml}, v{vml+1}")
        for w in range(1, 8):
            a(f"v_fmac_f32 v{vLs}, v{vml+2*w}, v{vml+2*w+1}")
        a("s_waitcnt lgkmcnt(0)")
        for k in range(nvals):
            a(f"v_mul_f32 v{dst[k]}, v{vml}, v{vo_list(0,k)}")
        for w in range(1, 8):
            for k in range(nvals):
                a(f"v_fmac_f32 v{dst[k]}, v{vml+2*w}, v{vo_list(w,k)}")
    combine8(vML, lambda w, k: vOw+2*w+k, 2, vT+4, vT+6, None, [vT, vT+2])
    a(f"v_mov_b32 v{vT+1}, {TAG}"); a(f"v_mov_b32 v{vT+3}, {TAG}")
    a(f"v_mov_b32 v{vT+5}, {TAG}"); a(f"v_mov_b32 v{vT+7}, {TAG}")
    a(f"global_store_dwordx4 v{vL16}, v[{vT}:{vT+3}], s[{sOS}:{sOS+1}] sc0 sc1")
    a(f"global_store_dwordx4 v{vTB}, v[{vT+4}:{vT+7}], s[{sOS}:{sOS+1}] offset:1024 sc0 sc1")
    a.label("L_nopub")
    a(f"s_lshl_b32 s{sT2}, s{sH}, 3"); a(f"s_add_u32 s{sT2}, s{sT2}, s{sWAVE}"); a(f"s_lshl_b32 s{sT2}, s{sT2}, 11")
    a(f"s_add_u32 s{sT4}, s{sWS}, s{sT2}"); a(f"s_addc_u32 s{sT5}, s{sWS+1}, 0")
    a(f"v_mov_b32 v{vTB}, 0")
    a(f"s_mov_b32 s{sSPIN}, 0")
    a.label("L_poll1")
    a(f"global_load_dwordx4 v[{vKV}:{vKV+3}], v{vL16}, s[{sT4}:{sT5}] sc0 sc1")
    a(f"global_load_dwordx4 v[{vKV+4}:{vKV+7}], v{vTB}, s[{sT4}:{sT5}] offset:1024 sc0 sc1")
    a(f"s_add_u32 s{sSPIN}, s{sSPIN}, 1")
    a(f"s_cmp_gt_u32 s{sSPIN}, 200000")
    a("s_cbranch_scc1 L_poll1_done")
    a("s_waitcnt vmcnt(0)")
    a(f"v_and_b32 v{vT}, v{vKV+1}, v{vKV+3}")
    a(f"v_and_b32 v{vT+1}, v{vKV+5}, v{vKV+7}")
    a(f"v_xor_b32 v{vT+2}, v{vKV+1}, v{vKV+3}")
    a(f"v_xor_b32 v{vT+3}, v{vKV+5}, v{vKV+7}")
    a(f"v_xor_b32 v{vT}, {TAG}, v{vT}")
    a(f"v_xor_b32 v{vT+1}, {TAG}, v{vT+1}")
    a(f"v_or3_b32 v{vT}, v{vT}, v{vT+1}, v{vT+2}")
    a(f"v_or_b32 v{vT}, v{vT}, v{vT+3}")
    a(f"v_cmp_ne_u32 vcc, 0, v{vT}")
    a("s_cbranch_vccnz L_poll1")
    a.label("L_poll1_done")
    a("s_waitcnt vmcnt(0)")
    a(f"v_mov_b32 v{vKV+1}, v{vKV+2}")
    a(f"v_mov_b32 v{vKV+5}, v{vKV+6}")
    a(f"v_lshlrev_b32 v{vTA}, 3, v{vLANE}")
    a(f"s_lshl_b32 s{sT2}, s{sWAVE}, 9")
    a(f"v_add_u32 v{vTA}, s{sT2}, v{vTA}")
    a(f"ds_write_b64 v{vTA}, v[{vKV}:{vKV+1}] offset:{L_O2}")
    a(f"s_lshl_b32 s{sT2}, s{sWAVE}, 3")
    a(f"v_mov_b32 v{vTB}, s{sT2}")
    a(f"ds_write_b64 v{vTB}, v[{vKV+4}:{vKV+5}] offset:{L_O2ML}")
    a("s_waitcnt lgkmcnt(0)")
    a("s_barrier")
    a(f"v_lshrrev_b32 v{vTA}, 3, v{vTID}")
    a(f"v_lshlrev_b32 v{vTA}, 2, v{vTA}")
    a(f"v_mov_b32 v{vTB}, 0")
    for w in range(8):
        a(f"ds_read_b64 v[{vML+2*w}:{vML+2*w+1}], v{vTB} offset:{L_O2ML+8*w}")
    for w in range(8):
        a(f"ds_read2st64_b32 v[{vOw+2*w}:{vOw+2*w+1}], v{vTA} offset0:{L_O2//256+2*w} offset1:{L_O2//256+2*w+1}")
    a("s_waitcnt lgkmcnt(8)")
    combine8(vML, lambda w, k: vOw+2*w+k, 2, vT+4, vT+6, None, [vT, vT+1])
    a(f"v_rcp_f32 v{vT+7}, v{vT+6}")
    a.nop(1)
    for k in range(2):
        a(f"v_mul_f32 v{vT+8}, v{vT+k}, v{vT+7}")
        a(f"v_fma_f32 v{vT+9}, -v{vT+8}, v{vT+6}, v{vT+k}")
        a(f"v_fma_f32 v{vT+k}, v{vT+9}, v{vT+7}, v{vT+8}")
    bf16r2(vT, vT+1, vT+8)
    def wmul(dst, wreg, val, first):
        for j in range(4):
            a(f"v_lshlrev_b32 v{vT+8}, 16, v{wreg+j}")
            a(f"v_and_b32 v{vT+9}, s{sMASK}, v{wreg+j}")
            op = "v_mul_f32" if first else "v_fmac_f32"
            a(f"{op} v{dst+2*j}, v{val}, v{vT+8}")
            a(f"{op} v{dst+2*j+1}, v{val}, v{vT+9}")
    wmul(vO, vWO, vT, True)
    wmul(vO, vWO+4, vT+1, False)
    def yreduce_store(r, ldsoff):
        swap_reduce8(r)
        a.nop(2)
        for j in range(2):
            a(f"v_add_f32_dpp v{r+j}, v{r+j}, v{r+j} row_ror:8 {DPP_ALL}")
        a(f"v_and_b32 v{vTA}, 7, v{vLANE}")
        a(f"v_lshlrev_b32 v{vTA}, 5, v{vTA}")
        a(f"v_lshrrev_b32 v{vTB}, 4, v{vLANE}")
        a(f"v_lshl_add_u32 v{vTA}, v{vTB}, 3, v{vTA}")
        a(f"s_lshl_b32 s{sT2}, s{sWAVE}, 8")
        a(f"v_add_u32 v{vTA}, s{sT2}, v{vTA}")
        a(f"ds_write_b64 v{vTA}, v[{r}:{r+1}] offset:{ldsoff}")
    yreduce_store(vO, L_YP)
    a("s_waitcnt lgkmcnt(0)")
    a("s_barrier")
    a(f"s_cmp_lg_u32 s{sWAVE}, 0")
    a("s_cbranch_scc1 L_end")
    a(f"v_lshlrev_b32 v{vTA}, 2, v{vLANE}")
    for w in range(8):
        a(f"ds_read_b32 v{vKV+w}, v{vTA} offset:{L_YP+256*w}")
        a(f"ds_read_b32 v{vKV+8+w}, v{vTA} offset:{L_BP+256*w}")
    a("s_waitcnt lgkmcnt(0)")
    for w in range(1, 8):
        a(f"v_add_f32 v{vKV}, v{vKV}, v{vKV+w}")
        a(f"v_add_f32 v{vKV+8}, v{vKV+8}, v{vKV+8+w}")
    a(f"v_mov_b32 v{vT}, v{vKV}"); a(f"v_mov_b32 v{vT+1}, {TAG}")
    a(f"v_mov_b32 v{vT+2}, v{vKV+8}"); a(f"v_mov_b32 v{vT+3}, {TAG}")
    a(f"global_store_dwordx4 v{vL16}, v[{vT}:{vT+3}], s[{sYS}:{sYS+1}] sc0 sc1")
    a(f"s_lshl_b32 s{sT2}, s{sS}, 15"); a(f"s_add_u32 s{sT2}, s{sT2}, {YSLOT}")
    a(f"s_lshl_b32 s{sT3}, s{sH}, 5"); a(f"s_add_u32 s{sT2}, s{sT2}, s{sT3}")
    a(f"s_add_u32 s{sT4}, s{sWS}, s{sT2}"); a(f"s_addc_u32 s{sT5}, s{sWS+1}, 0")
    a(f"v_and_b32 v{vTA}, 31, v{vLANE}")
    a(f"v_lshlrev_b32 v{vTA}, 10, v{vTA}")
    a(f"v_lshrrev_b32 v{vTB}, 5, v{vLANE}")
    a(f"v_lshl_add_u32 v{vTA}, v{vTB}, 4, v{vTA}")
    a(f"s_mov_b32 s{sSPIN}, 0")
    a.label("L_poll2")
    a(f"global_load_dwordx4 v[{vKV}:{vKV+3}], v{vTA}, s[{sT4}:{sT5}] sc0 sc1")
    a(f"s_add_u32 s{sSPIN}, s{sSPIN}, 1")
    a(f"s_cmp_gt_u32 s{sSPIN}, 200000")
    a("s_cbranch_scc1 L_poll2_done")
    a("s_waitcnt vmcnt(0)")
    a(f"v_xor_b32 v{vT}, {TAG}, v{vKV+1}")
    a(f"v_xor_b32 v{vT+1}, {TAG}, v{vKV+3}")
    a(f"v_or_b32 v{vT}, v{vT}, v{vT+1}")
    a(f"v_cmp_ne_u32 vcc, 0, v{vT}")
    a("s_cbranch_vccnz L_poll2")
    a.label("L_poll2_done")
    a("s_waitcnt vmcnt(0)")
    a.nop(1)
    for pat in ("quad_perm:[1,0,3,2]", "quad_perm:[2,3,0,1]", "row_half_mirror", "row_mirror"):
        a(f"v_add_f32_dpp v{vKV}, v{vKV}, v{vKV} {pat} {DPP_ALL}")
        a(f"v_add_f32_dpp v{vKV+2}, v{vKV+2}, v{vKV+2} {pat} {DPP_ALL}")
        a.nop(1)
    a.nop(1)
    for k, ln in enumerate((0, 16, 32, 48)):
        a(f"v_readlane_b32 s{sT0+k}, v{vKV}, {ln}")
    a.nop(2)
    a(f"v_mov_b32 v{vT}, s{sT0}"); a(f"v_add_f32 v{vT}, s{sT0+1}, v{vT}")
    a(f"v_mov_b32 v{vT+1}, s{sT0+2}"); a(f"v_add_f32 v{vT+1}, s{sT0+3}, v{vT+1}")
    a.nop(2)
    for k, ln in enumerate((0, 16, 32, 48)):
        a(f"v_readlane_b32 s{sT0+k}, v{vKV+2}, {ln}")
    a.nop(2)
    a(f"v_mov_b32 v{vT+2}, s{sT0}"); a(f"v_add_f32 v{vT+2}, s{sT0+1}, v{vT+2}")
    a(f"v_mov_b32 v{vT+3}, s{sT0+2}"); a(f"v_add_f32 v{vT+3}, s{sT0+3}, v{vT+3}")
    bf16r2(vT, vT+1, vT+8)
    bf16r2(vT+2, vT+3, vT+8)
    a("s_waitcnt lgkmcnt(0)")
    a(f"s_lshl_b32 s{sT0}, s{sXRES}, 16"); a(f"s_and_b32 s{sT1}, s{sXRES}, s{sMASK}")
    a(f"v_add_f32 v{vT}, s{sT0}, v{vT}"); a(f"v_add_f32 v{vT+1}, s{sT1}, v{vT+1}")
    bf16r2(vT, vT+1, vT+8)
    a(f"v_add_f32 v{vT}, v{vT}, v{vT+2}"); a(f"v_add_f32 v{vT+1}, v{vT+1}, v{vT+3}")
    a(f"v_cvt_pk_bf16_f32 v{vT}, v{vT}, v{vT+1}")
    a(f"s_lshl_b32 s{sT2}, s{sS}, 7"); a(f"s_lshl_b32 s{sT3}, s{sH}, 2"); a(f"s_add_u32 s{sT2}, s{sT2}, s{sT3}")
    a(f"v_mov_b32 v{vTA}, s{sT2}")
    a(f"v_cmp_eq_u32 vcc, 0, v{vLANE}")
    a(f"s_and_saveexec_b64 s[{sEX}:{sEX+1}], vcc")
    a(f"global_store_dword v{vTA}, v{vT}, s[{sOUT}:{sOUT+1}]")
    a.label("L_end")
    a("s_endpgm")

    def p_addr():
        a(f"v_lshrrev_b32 v{vTA}, 3, v{vTID}")
        a(f"v_min_u32 v{vTA}, 42, v{vTA}")
        a(f"s_mul_i32 s{sT2}, s{sH}, 43")
        a(f"v_add_u32 v{vTA}, s{sT2}, v{vTA}")
        a(f"v_lshlrev_b32 v{vTA}, 3, v{vTA}")
        a(f"v_mov_b32 v{vTB}, 0")
    a.label("L_p1")
    p_addr()
    a(f"global_load_dwordx2 v[{vP}:{vP+1}], v{vTA}, s[{sHB}:{sHB+1}] sc0 sc1")
    a(f"global_load_dword v{vP+2}, v{vTB}, s[{sDBG}:{sDBG+1}] sc0 sc1")
    a("s_branch L_p1_ret")
    a.label("L_p2")
    a(f"s_mov_b32 s{sSPIN}, 0")
    a.label("L_p2_chk")
    a(f"v_xor_b32 v{vT}, {TAG}, v{vP+1}")
    a(f"v_xor_b32 v{vT+1}, 0x100, v{vP+2}")
    a(f"v_or_b32 v{vT}, v{vT}, v{vT+1}")
    a(f"v_cmp_ne_u32 vcc, 0, v{vT}")
    a("s_cbranch_vccz L_p2_ok")
    a(f"s_add_u32 s{sSPIN}, s{sSPIN}, 1")
    a(f"s_cmp_gt_u32 s{sSPIN}, 200000")
    a("s_cbranch_scc1 L_p2_ok")
    p_addr()
    a(f"global_load_dwordx2 v[{vP}:{vP+1}], v{vTA}, s[{sHB}:{sHB+1}] sc0 sc1")
    a(f"global_load_dword v{vP+2}, v{vTB}, s[{sDBG}:{sDBG+1}] sc0 sc1")
    a("s_waitcnt vmcnt(0)")
    a("s_branch L_p2_chk")
    a.label("L_p2_ok")
    a(f"v_lshrrev_b32 v{vTA}, 3, v{vTID}")
    a(f"v_cmp_gt_u32 vcc, 43, v{vTA}")
    a.nop(2)
    a(f"v_cndmask_b32 v{vP}, 0, v{vP}, vcc")
    vBA = vT
    for j in range(4):
        a(f"v_lshlrev_b32 v{vT+8}, 16, v{vWD+j}")
        a(f"v_and_b32 v{vT+9}, s{sMASK}, v{vWD+j}")
        a(f"v_mul_f32 v{vBA+2*j}, v{vP}, v{vT+8}")
        a(f"v_mul_f32 v{vBA+2*j+1}, v{vP}, v{vT+9}")
    yreduce_store(vBA, L_BP)
    a("s_branch L_p2_ret")

    a.L.append('.section .rodata,"a"')
    a.L.append(".p2align 6")
    a.L.append(f".amdhsa_kernel {KN}")
    a.L.append("  .amdhsa_next_free_vgpr 256")
    a.L.append("  .amdhsa_next_free_sgpr 96")
    a.L.append("  .amdhsa_accum_offset 256")
    a.L.append("  .amdhsa_group_segment_fixed_size 0")
    a.L.append("  .amdhsa_kernarg_size 96")
    a.L.append("  .amdhsa_user_sgpr_count 2")
    a.L.append("  .amdhsa_user_sgpr_kernarg_segment_ptr 1")
    a.L.append("  .amdhsa_system_sgpr_workgroup_id_x 1")
    a.L.append(".end_amdhsa_kernel")
    open(fname, "w").write("\n".join(a.L) + "\n")

if __name__ == "__main__":
    gen(sys.argv[1] if len(sys.argv) > 1 else "parallel_sum__mha_block_cached__geglu_ffn__decode.s")
```
